```python
import torch

def _softmax(x, axis=-1):
    return torch.softmax(x, dim=axis)

def _gelu(x):
    return torch.nn.functional.gelu(x, approximate='tanh')

def _silu(x):
    return torch.nn.functional.silu(x)

def _sigmoid(x):
    return torch.sigmoid(x)

def _layernorm(x, axis=-1, eps=1e-05):
    m = x.mean(dim=axis, keepdim=True)
    v = x.var(dim=axis, keepdim=True, unbiased=False)
    return (x - m) / torch.sqrt(v + eps)

def _scatter_add(tgt, idx, src, axis=0):
    return tgt.clone().index_add_(axis, idx, src)

def _segment_sum(src, seg, n):
    out = torch.zeros((n,) + src.shape[1:], dtype=src.dtype)
    return out.index_add_(0, seg, src)

def _pad(x, pw):
    flat = tuple((v for pair in reversed(pw) for v in pair))
    return torch.nn.functional.pad(x, flat)
kernel_name = 'adaLN_cond__ssm_conv_h3__glu_gated_bilinear__prompt'

def setup_inputs():

    _w = lambda a: (lambda t: t.to(torch.bfloat16) if t.is_floating_point() else t)(torch.as_tensor(a))

    def _A_setup():
        B, S, D = (1, 2048, 448)
        ks = 4
        return {'q': _w((lambda *s: torch.randn(*s, dtype=torch.bfloat16) * 0.05)(B, S, D)), 'k': _w((lambda *s: torch.randn(*s, dtype=torch.bfloat16) * 0.8)(B, S, D)), 'v': _w((lambda *s: torch.randn(*s, dtype=torch.bfloat16) * 0.8)(B, S, D)), 'shift_k': _w((lambda *s: torch.randn(*s, dtype=torch.bfloat16) * 0.8)(D, ks) * 0.5), 'ssm_k': _w((lambda *s: torch.randn(*s, dtype=torch.bfloat16) * 0.8)(D, S) * (1.0 / S ** 0.5)), 'ssm_D': _w((lambda *s: torch.randn(*s, dtype=torch.bfloat16) * 0.8)(D))}
    _A_in = _A_setup()

    def _B_setup():
        B, S, D, F = (1, 2048, 448, 1792)
        return {'x': _w((lambda *s: torch.randn(*s, dtype=torch.bfloat16) * 0.05)(B, S, D)), 'w_gate': _w((lambda *s: torch.randn(*s, dtype=torch.bfloat16) * 0.8)(D, F) * D ** (-0.5)), 'w_up': _w((lambda *s: torch.randn(*s, dtype=torch.bfloat16) * 0.8)(D, F) * D ** (-0.5)), 'w_down': _w((lambda *s: torch.randn(*s, dtype=torch.bfloat16) * 0.8)(F, D) * F ** (-0.5))}
    _B_in = _B_setup()
    return {'A_q': _A_in['q'], 'A_k': _A_in['k'], 'A_v': _A_in['v'], 'A_shift_k': _A_in['shift_k'], 'A_ssm_k': _A_in['ssm_k'], 'A_ssm_D': _A_in['ssm_D'], 'B_x': _B_in['x'], 'B_w_gate': _B_in['w_gate'], 'B_w_up': _B_in['w_up'], 'B_w_down': _B_in['w_down'], 'c': _w((lambda *s: torch.randn(*s, dtype=torch.bfloat16) * 0.2)(1, 448) * 8.0), 'w_mod': _w((lambda *s: torch.randn(*s, dtype=torch.bfloat16) * 0.2)(448, 6 * 448) * 448 ** (-0.5) * 8.0)}

def reference(A_q, A_k, A_v, A_shift_k, A_ssm_k, A_ssm_D, B_x, B_w_gate, B_w_up, B_w_down, c, w_mod):

    def _A_ref(q, k, v, shift_k, ssm_k, ssm_D):
        B, S, D = q.shape
        ks = shift_k.shape[-1]
        k_pad = _pad(k, ((0, 0), (ks - 1, 0), (0, 0)))
        k_shift = torch.zeros_like(k)
        for t in range(ks):
            k_shift = k_shift + k_pad[:, t:t + S, :] * shift_k[:, ks - 1 - t][None, None, :]
        kv = k_shift * v
        L = 2 * S
        kv_pad = _pad(kv, ((0, 0), (0, S), (0, 0)))
        kf_pad = _pad(ssm_k, ((0, 0), (0, S)))
        kv_f = (lambda x, axes=(-2, -1): torch.fft.rfft2(x.float(), dim=axes))(kv_pad[:, None, :, :], axes=(1, 2))
        kf_f = (lambda x, axes=(-2, -1): torch.fft.rfft2(x.float(), dim=axes))(kf_pad[:, None, :], axes=(1, 2))
        kf_f = (lambda x, *d: x.permute(*d))(kf_f, 1, 2, 0)
        y_f = kv_f * kf_f[None, :, :, :]
        y = (lambda x, s, axes=(-2, -1): torch.fft.irfft2(x, s=s, dim=axes).to(torch.bfloat16))(y_f, (1, L), axes=(1, 2))[:, 0, :S, :]
        y = y + kv * ssm_D[None, None, :]
        return q * y

    def _B_ref(x, w_gate, w_up, w_down):
        g = torch.einsum('bsd,df->bsf', x, w_gate)
        u = torch.einsum('bsd,df->bsf', x, w_up)
        h = g * u
        return torch.einsum('bsf,fd->bsd', h, w_down)
    x = A_q
    mod = (_silu(c) @ w_mod).reshape(c.shape[0], 6, 1, -1)
    sa, ca, ga, sb, cb, gb = (mod[:, 0].clone(), mod[:, 1].clone(), mod[:, 2].clone(), mod[:, 3].clone(), mod[:, 4].clone(), mod[:, 5].clone())
    h = _layernorm(x, axis=-1) * (1 + ca) + sa
    x = x + ga * _A_ref(h, A_k, A_v, A_shift_k, A_ssm_k, A_ssm_D)
    h = _layernorm(x, axis=-1) * (1 + cb) + sb
    x = x + gb * _B_ref(h, B_w_gate, B_w_up, B_w_down)
    return x
```

```python
import re

REG_RE = re.compile(r"^(-|abs\()?([vas])(\d+)\)?$")
RNG_RE = re.compile(r"^(-|abs\()?([vas])\[(\d+):(\d+)\]\)?$")


def regs_of(op):
    op = op.strip()
    m = REG_RE.match(op)
    if m:
        return [(m.group(2), int(m.group(3)))]
    m = RNG_RE.match(op)
    if m:
        return [(m.group(2), i) for i in range(int(m.group(3)), int(m.group(4)) + 1)]
    if op in ("vcc", "vcc_lo", "vcc_hi"):
        return [("x", "vcc")]
    if op in ("exec", "exec_lo", "exec_hi"):
        return [("x", "exec")]
    if op == "m0":
        return [("x", "m0")]
    return []


TRANS = ("v_exp_f32", "v_log_f32", "v_rcp_f32", "v_rsq_f32", "v_sqrt_f32", "v_sin_f32", "v_cos_f32")
NODEST_S = ("s_cmp", "s_waitcnt", "s_barrier", "s_branch", "s_cbranch", "s_nop", "s_endpgm",
            "s_sleep", "s_setprio", "s_bitcmp")


class Ins:
    def __init__(self, text, tag=None):
        self.text = text
        self.tag = tag
        t = text.split(";")[0].strip()
        parts = t.split(None, 1)
        self.mn = parts[0]
        rest = parts[1] if len(parts) > 1 else ""
        ops = [o.strip() for o in re.split(r",(?![^\[]*\])", rest)] if rest else []
        self.mods = ""
        if ops:
            last = ops[-1].split(None, 1)
            ops[-1] = last[0]
            self.mods = last[1] if len(last) > 1 else ""
        self.ops = ops
        mn = self.mn
        self.is_mfma = mn.startswith("v_mfma")
        self.is_valu = mn.startswith("v_") and not self.is_mfma
        self.is_ds = mn.startswith("ds_")
        self.is_vmem = mn.startswith("buffer_") or mn.startswith("global_")
        self.is_smem = mn.startswith("s_load") or mn.startswith("s_memtime") or mn.startswith("s_memrealtime") \
            or mn.startswith("s_atomic") or mn.startswith("s_buffer_load")
        self.is_salu = mn.startswith("s_") and not self.is_smem
        self.is_dma = self.is_vmem and re.search(r"\blds\b", self.mods) is not None
        self.is_dpp = "_dpp" in mn
        self.is_dot = mn.startswith("v_dot")
        self.is_trans = any(mn.startswith(x) for x in TRANS)
        R = [regs_of(o) for o in ops]
        flat = lambda L: [r for x in L for r in x]
        w, r = [], []
        if self.is_mfma:
            w, r = R[0], flat(R[1:])
            self.srcc = R[3]
            self.srcab = R[1] + R[2]
            self.passes = 8 if "32x32" in mn else 4
        elif self.is_valu:
            w, r = R[0], flat(R[1:])
            if mn.startswith(("v_fmac", "v_dot2c", "v_pk_fmac", "v_writelane")) or self.is_dpp:
                r = r + R[0]
            if "swap" in mn:
                w = R[0] + R[1]
                r = w
            if mn.startswith("v_cndmask") and len(ops) == 3:
                r = r + [("x", "vcc")]
        elif self.is_ds:
            if mn.startswith(("ds_read", "ds_bpermute", "ds_swizzle", "ds_permute")):
                w, r = R[0], flat(R[1:])
            else:
                r = flat(R)
        elif self.is_vmem:
            if self.is_dma:
                r = flat(R) + [("x", "m0")]
            elif "_load" in mn:
                w, r = R[0], flat(R[1:])
            elif "_atomic" in mn and re.search(r"\bsc0\b", self.mods):
                w, r = R[0], flat(R)
            else:
                r = flat(R)
        elif self.is_smem:
            w, r = R[0], flat(R[1:])
            if mn.startswith("s_atomic"):
                r = r + R[0]
        elif self.is_salu:
            if mn.startswith(NODEST_S):
                r = flat(R)
                if "vcc" in mn:
                    r = r + [("x", "vcc")]
            else:
                w, r = R[0], flat(R[1:])
                if "saveexec" in mn:
                    w = w + [("x", "exec")]
        self.w, self.r = set(w), set(r)
        self.wide_store = self.is_vmem and ("store_dwordx4" in mn or "store_dwordx3" in mn)
        self.store_data = set(R[0]) if self.wide_store else set()

    def states(self):
        if self.mn == "s_nop":
            return int(self.ops[0], 0) + 1
        return 1


def need_states(p, c):
    n = 0
    vw = {x for x in p.w if x[0] in "va"}
    sw = {x for x in p.w if x[0] == "s" or x == ("x", "vcc")}
    if p.is_valu:
        if c.is_mfma and vw & c.r:
            n = max(n, 3 if p.is_dot else 2)
        if c.is_dpp and vw & c.r:
            n = max(n, 2)
        if "permlane" in c.mn and vw & c.r:
            n = max(n, 2)
        if c.mn.startswith(("v_readlane", "v_readfirstlane")) and vw & c.r:
            n = max(n, 1)
        if sw and c.is_vmem and sw & c.r:
            n = max(n, 5)
        if sw and c.is_valu and sw & c.r:
            n = max(n, 4 if c.mn.startswith(("v_readlane", "v_writelane")) else 2)
        if sw and (c.is_salu or c.is_smem) and sw & c.r:
            n = max(n, 1)
        if p.is_trans and c.is_valu and vw & c.r:
            n = max(n, 1)
        if p.is_dot and vw & (c.r | c.w):
            if c.mn == p.mn:
                ab = set()
                for o in c.ops[1:3]:
                    ab |= set(regs_of(o))
                if vw & ab:
                    n = max(n, 3)
            else:
                n = max(n, 3)
        if ("sdwa" in p.mn or ("op_sel" in p.mods and not p.mn.startswith("v_pk"))) and c.is_valu and vw & c.r:
            n = max(n, 1)
        if ("x", "exec") in p.w and (c.is_dpp or c.is_mfma):
            n = max(n, 5)
    if p.is_mfma:
        big = 12 if p.passes == 8 else 8
        if c.is_mfma:
            if p.w & set(c.srcab):
                n = max(n, big)
            sc = set(c.srcc)
            if p.w & sc and not (p.w == sc and p.passes == c.passes):
                n = max(n, big - 2)
            if p.w & c.w and not p.w & sc:
                n = max(n, big - 2)
        elif (c.is_valu or c.is_ds or c.is_vmem) and p.w & (c.r | c.w):
            n = max(n, big)
        if c.is_valu and set(p.srcc) & c.w:
            n = max(n, 7 if p.passes == 8 else 3)
    if p.wide_store and p.store_data & c.w:
        n = max(n, 2)
    if p.is_salu and ("x", "m0") in p.w and c.is_dma:
        n = max(n, 1)
    return n


class Prog:
    def __init__(self):
        self.items = []

    def __call__(self, text, tag=None):
        for line in text.strip().split("\n"):
            line = line.strip()
            if not line or line.startswith(";"):
                continue
            if line.endswith(":") or line.startswith("."):
                self.items.append(("raw", line))
            else:
                self.items.append(Ins(line, tag))
        return self

    def add(self, items):
        for it in items:
            if isinstance(it, str):
                self(it)
            elif isinstance(it, list):
                self.add(it)
            else:
                self.items.append(it)

    def label(self, name):
        self.items.append(("raw", name + ":"))

    def comment(self, text):
        self.items.append(("raw", "; " + text))

    def wait(self, *tags):
        self.items.append(("wait", tags))

    def snapshot(self, name):
        self.items.append(("snap", name))

    def restore(self, name):
        self.items.append(("rest", name))

    def finalize(self, verbose=False):
        out = []
        vm, lg = [], []
        snaps = {}
        seen_tags = set()
        nwait = 0

        def emit_wait(nv, nl):
            nonlocal nwait
            parts = []
            if nv is not None:
                nv = min(nv, 63)
                parts.append(f"vmcnt({nv})")
                del vm[:max(0, len(vm) - nv)]
            if nl is not None:
                if any(o.is_smem for o in lg):
                    nl = 0
                nl = min(nl, 15)
                parts.append(f"lgkmcnt({nl})")
                del lg[:max(0, len(lg) - nl)]
            if parts:
                out.append(Ins("s_waitcnt " + " ".join(parts)))
                nwait += 1

        def last_idx(q, pred):
            for i in range(len(q) - 1, -1, -1):
                if pred(q[i]):
                    return i
            return None

        for it in self.items:
            if isinstance(it, tuple):
                if it[0] == "raw":
                    out.append(it)
                elif it[0] == "snap":
                    snaps[it[1]] = (list(vm), list(lg))
                elif it[0] == "rest":
                    vm[:], lg[:] = list(snaps[it[1]][0]), list(snaps[it[1]][1])
                    out.append(("cut",))
                elif it[0] == "wait":
                    for t in it[1]:
                        assert t in seen_tags, f"wait on unknown tag {t}"
                    iv = last_idx(vm, lambda o: o.tag in it[1])
                    il = last_idx(lg, lambda o: o.tag in it[1])
                    emit_wait(None if iv is None else len(vm) - 1 - iv,
                              None if il is None else len(lg) - 1 - il)
                continue
            touched = it.r | it.w
            iv = last_idx(vm, lambda o: o.w & touched)
            il = last_idx(lg, lambda o: o.w & touched)
            emit_wait(None if iv is None else len(vm) - 1 - iv,
                      None if il is None else len(lg) - 1 - il)
            if it.mn == "s_waitcnt":
                m = re.search(r"vmcnt\((\d+)\)", it.text)
                if m:
                    del vm[:max(0, len(vm) - int(m.group(1)))]
                m = re.search(r"lgkmcnt\((\d+)\)", it.text)
                if m:
                    k = int(m.group(1))
                    assert k == 0 or not any(o.is_smem for o in lg)
                    del lg[:max(0, len(lg) - k)]
            if it.is_vmem and len(vm) >= 63:
                emit_wait(62, None)
            out.append(it)
            if it.tag:
                seen_tags.add(it.tag)
            if it.is_vmem:
                vm.append(it)
            elif it.is_ds or it.is_smem:
                lg.append(it)

        res = []
        hist = []
        nnop = 0
        for it in out:
            if isinstance(it, tuple):
                if it[0] == "cut":
                    hist = []
                else:
                    res.append(it[1])
                continue
            need = 0
            dist = 0
            why = None
            for p in reversed(hist):
                k = need_states(p, it) - dist
                if k > need:
                    need, why = k, p
                dist += p.states()
                if dist >= 13:
                    break
            if need > 0:
                nop = Ins(f"s_nop {need - 1}")
                res.append("    " + nop.text)
                hist.append(nop)
                nnop += 1
                if verbose:
                    print(f"nop {need}: {why.text}  ->  {it.text}")
            res.append("    " + it.text)
            hist.append(it)
            hist = hist[-16:]
        if verbose:
            print(f"auto waits {nwait}, nops {nnop}")
        return "\n".join(res) + "\n"


def I(text, tag=None):
    return Ins(text, tag)


def W(*tags):
    return ("wait", tags)


def weave(main, fill, per=1, start=0):
    out = []
    fi = 0
    acc = 0.0
    for i, m in enumerate(main):
        out.append(m)
        if i >= start:
            acc += per
            while acc >= 1 and fi < len(fill):
                out.append(fill[fi])
                fi += 1
                acc -= 1
    out.extend(fill[fi:])
    return out
```

```python
import sys
from asmlib import Prog, I, W, weave

NAME = "adaLN_cond__ssm_conv_h3__glu_gated_bilinear__prompt"

WS_EPOCH = 0
WS_F0 = 0x1000
WS_F2 = 0x10000
WS_F3 = 0x40000
WS_MOD = 0xB0000
WS_STAMP = 0xC0000
WS_U, U_PITCH = 0x100000, 4224
WS_X1 = 0x300000
WS_H2 = 0x500000
WS_Z, Z_PITCH = 0x700000, 16512
WS_H = 0xB00000
WS_SIZE = 0x1200000

L_K = 0
L_U = 8256
L_RS = 17472
L_SA = 37952
L_X0 = 0
L_X1 = 37952
L_WD = 66624
LDS_BYTES = 163840
L_WD = LDS_BYTES - 4 * 6 * 4096
L_X1 = L_WD - 28672
L_R3 = (0, 17408)

sK, sV, sSH, sQ, sSK, sWS, sWG, sWU, sWD, sOUT, sC, sWM, sCODE = [f"s[{4+4*i}:{7+4*i}]" for i in range(13)]
def srd(i): return 4 + 4 * i
sX, sJ, sWV, sTAG, sD, sEP = "s58", "s59", "s60", "s61", "s62", "s63"
sT0, sT1, sT2, sT3, sT4, sT5 = "s64", "s65", "s66", "s67", "s68", "s69"
sRETRY = "s70"
sHI = "s71"
STAMP0 = 72
SPIN_MAX = 100000


def vr(a, n=1):
    return f"v{a}" if n == 1 else f"v[{a}:{a+n-1}]"


def ar(a, n=1):
    return f"a{a}" if n == 1 else f"a[{a}:{a+n-1}]"


class Gen:
    def __init__(self, stop=99, stamps=False, opt=None):
        self.p = Prog()
        self.tail = []
        self.stop = stop
        self.stamps = stamps
        self.nstamp = 0
        self.nlab = 0
        self.opt = opt or {}

    def lab(self, base):
        self.nlab += 1
        return f"L_{base}_{self.nlab}"

    def stamp(self):
        if self.stamps:
            i = self.nstamp
            assert i < 15
            self.p(f"s_memrealtime s[{STAMP0+2*i}:{STAMP0+2*i+1}]")
        self.nstamp += 1

    def skip_if_scc1(self, target):
        stub = self.lab("skip")
        self.p(f"s_cbranch_scc1 {stub}")
        self.tail.append(f"{stub}:\ns_waitcnt vmcnt(0) lgkmcnt(0)\ns_branch {target}")

    def check(self, loads, cmp_code):
        ok, retry = self.lab("ok"), self.lab("retry")
        items = [I(x) for x in cmp_code] + [[I(f"s_cbranch_vccnz {retry}"), ("raw", ok + ":")]]
        body = "\n".join(loads)
        cmpc = "\ns_nop 1\n".join(cmp_code)
        self.tail.append(f"""{retry}:
s_add_u32 {sRETRY}, {sRETRY}, 1
s_cmp_gt_u32 {sRETRY}, {SPIN_MAX}
s_cbranch_scc1 {ok}
s_waitcnt vmcnt(0) lgkmcnt(0)
s_nop 4
{body}
s_waitcnt vmcnt(0)
{cmpc}
s_nop 1
s_cbranch_vccnz {retry}
s_branch {ok}""")
        return items

    def flag_store(self, soff):
        return [I(f"buffer_store_dword v2, v4, {sWS}, {soff} offen sc0 sc1")]

    def prologue(self):
        p = self.p
        self.stamp()
        p(f"""
s_cmp_ge_u32 s2, 256
s_cbranch_scc1 L_exit
s_load_dwordx2 s[{srd(0)}:{srd(0)+1}], s[0:1], 8
s_load_dwordx2 s[{srd(1)}:{srd(1)+1}], s[0:1], 16
s_load_dwordx2 s[{srd(2)}:{srd(2)+1}], s[0:1], 24
s_load_dwordx2 s[{srd(3)}:{srd(3)+1}], s[0:1], 0
s_load_dwordx2 s[{srd(4)}:{srd(4)+1}], s[0:1], 32
s_load_dwordx2 s[{srd(5)}:{srd(5)+1}], s[0:1], 112
s_load_dwordx2 s[56:57], s[0:1], 40
""")
        sizes = [1835008, 1835008, 3584, 1835008, 1835008, WS_SIZE, 1605632, 1605632, 1605632, 1835008, 896, 2408448]
        for i, sz in enumerate(sizes):
            p(f"s_mov_b32 s{srd(i)+2}, {sz}\ns_mov_b32 s{srd(i)+3}, 0x20000")
        p(f"""
s_and_b32 {sX}, s2, 7
s_lshr_b32 {sJ}, s2, 3
s_getpc_b64 s[{srd(12)}:{srd(12)+1}]
L_pc:
s_mov_b32 s{srd(12)+2}, L_code_end-L_pc
s_mov_b32 s{srd(12)+3}, 0x20000
s_mov_b32 {sRETRY}, 0
s_mov_b32 {sHI}, 0xffff0000
v_lshrrev_b32 v2, 6, v0
v_and_b32 v1, 63, v0
v_lshlrev_b32 v14, 4, v1
v_readfirstlane_b32 {sWV}, v2
s_waitcnt lgkmcnt(0)
s_load_dword {sEP}, s[{srd(5)}:{srd(5)+1}], {WS_EPOCH}
s_load_dwordx2 s[{srd(6)}:{srd(6)+1}], s[0:1], 56
s_load_dwordx2 s[{srd(7)}:{srd(7)+1}], s[0:1], 64
s_load_dwordx2 s[{srd(8)}:{srd(8)+1}], s[0:1], 72
s_load_dwordx2 s[{srd(9)}:{srd(9)+1}], s[0:1], 96
s_load_dwordx2 s[{srd(10)}:{srd(10)+1}], s[0:1], 80
s_load_dwordx2 s[{srd(11)}:{srd(11)+1}], s[0:1], 88
""")

    def finish_scalars(self):
        self.p(f"""
s_waitcnt lgkmcnt(0)
s_mul_i32 {sTAG}, {sEP}, 0x9E3779B1
s_add_u32 {sTAG}, {sTAG}, 0x7F4A7C15
s_cmp_ge_u32 {sJ}, 28
s_cselect_b32 s{srd(6)+2}, 0, s{srd(6)+2}
s_cselect_b32 s{srd(7)+2}, 0, s{srd(7)+2}
v_mov_b32 v2, {sTAG}
""")

    def q_loads(self):
        self.p(f"""
s_lshl_b32 {sT0}, {sWV}, 8
s_lshl_b32 {sT1}, {sX}, 5
s_add_u32 {sT0}, {sT0}, {sT1}
s_add_u32 {sT0}, {sT0}, {sJ}
s_mul_i32 {sT0}, {sT0}, 1792
v_lshlrev_b32 v3, 4, v1
v_add_u32 v3, {sT0}, v3
v_mov_b32 v4, 0x7ff00000
v_cmp_gt_u32 vcc, 56, v1
v_cndmask_b32 v3, v4, v3, vcc
v_cmp_ne_u32 vcc, 0, v1
v_cndmask_b32 v4, 0, v4, vcc
buffer_load_dwordx4 v[16:19], v3, {sQ}, 0 offen nt
buffer_load_dwordx4 v[20:23], v3, {sQ}, 0 offen offset:896 nt
""")

    def code_prefetch(self):
        self.p(f"""
v_lshlrev_b32 v5, 7, v0
buffer_load_dword v6, v5, {sCODE}, 0 offen
""")

    def p0(self):
        p = self.p
        KR, VR, SH = 128, 148, 156
        SEL, ACC, VU, PK = 172, 204, 220, 236
        p(f"""
s_lshl_b32 {sT0}, {sJ}, 6
s_lshl_b32 {sT1}, {sWV}, 4
s_add_u32 {sT0}, {sT0}, {sT1}
s_mul_i32 {sT0}, {sT0}, 896
s_lshl_b32 {sT1}, {sX}, 7
s_add_u32 {sT0}, {sT0}, {sT1}
v_lshrrev_b32 v7, 3, v1
v_and_b32 v8, 7, v1
v_mul_u32_u24 v9, 1792, v7
v_lshl_add_u32 v9, v8, 4, v9
v_add_u32 v9, {sT0}, v9
v_subrev_u32 v10, 2688, v9
v_subrev_u32 v11, 1792, v9
v_subrev_u32 v12, 896, v9
s_lshl_b32 {sT1}, {sX}, 9
v_lshlrev_b32 v13, 6, v8
buffer_load_dwordx4 {vr(KR+12,4)}, v9, {sK}, 0 offen nt
buffer_load_dwordx4 {vr(KR+16,4)}, v9, {sK}, 0 offen offset:896 nt
buffer_load_dwordx4 {vr(VR,4)}, v9, {sV}, 0 offen nt
buffer_load_dwordx4 {vr(VR+4,4)}, v9, {sV}, 0 offen offset:896 nt
buffer_load_dwordx4 {vr(KR,4)}, v10, {sK}, 0 offen nt
buffer_load_dwordx4 {vr(KR+4,4)}, v11, {sK}, 0 offen nt
buffer_load_dwordx4 {vr(KR+8,4)}, v12, {sK}, 0 offen nt
""")
        for i in range(4):
            p(f"buffer_load_dwordx4 {vr(SH+4*i,4)}, v13, {sSH}, {sT1} offen offset:{16*i}")
        p(f"""
s_lshl_b32 {sT0}, {sX}, 5
s_add_u32 {sT0}, {sT0}, {sJ}
s_lshl_b32 {sT2}, {sT0}, 2
s_load_dword {sD}, s[56:57], {sT2}
s_lshl_b32 {sT0}, {sT0}, 13
s_lshl_b32 {sT1}, {sWV}, 11
s_add_u32 {sT0}, {sT0}, {sT1}
s_lshr_b32 {sT2}, {sWV}, 1
s_lshl_b32 {sT2}, {sT2}, 5
s_add_u32 {sT1}, {sT1}, {sT2}
s_add_u32 m0, {sT1}, {L_K+32}
""")
        p(f"buffer_load_dwordx4 v14, {sSK}, {sT0} offen nt lds", "kdma")
        p(f"buffer_load_dwordx4 v14, {sSK}, {sT0} offen offset:1024 nt lds", "kdma")
        self.q_loads()
        self.code_prefetch()
        p(f"""
v_mov_b32 v112, 0
v_mov_b32 v113, 0
v_mov_b32 v114, 0
v_mov_b32 v115, 0
v_lshrrev_b32 v116, 5, v1
v_and_b32 v117, 31, v1
v_mul_u32_u24 v118, 4608, v116
v_lshl_add_u32 v118, v117, 4, v118
v_mul_u32_u24 v119, 4128, v116
v_and_b32 v117, 1, v1
v_lshl_add_u32 v119, v117, 4, v119
""")
        p(f"ds_write_b128 v118, v[112:115] offset:{L_U}", "pads")
        p(f"ds_write_b128 v119, v[112:115] offset:{L_K}", "pads")
        self.finish_scalars()
        p(f"""
s_lshl_b32 {sT0}, {sWV}, 1
v_lshrrev_b32 v112, 2, v7
v_add_u32 v112, {sT0}, v112
v_xor_b32 v112, v112, v8
v_lshlrev_b32 v112, 4, v112
v_and_b32 v113, 3, v7
v_lshl_add_u32 v112, v113, 2, v112
v_lshl_add_u32 v112, v8, 10, v112
""")
        p(f"""
v_xor_b32 v113, {sT0}, v8
v_lshlrev_b32 v113, 4, v113
v_lshl_add_u32 v113, v7, 7, v113
s_lshl_b32 {sT1}, {sWV}, 11
v_add_u32 v113, {sT1}, v113
v_xor_b32 v114, 16, v113
s_lshl_b32 {sT0}, {sX}, 6
s_lshl_b32 {sT1}, {sWV}, 4
s_add_u32 {sT0}, {sT0}, {sT1}
s_mul_i32 {sT0}, {sT0}, {U_PITCH}
s_lshl_b32 {sT1}, {sJ}, 7
s_add_u32 {sT0}, {sT0}, {sT1}
s_add_u32 {sT3}, {sT0}, {WS_U}
s_add_u32 {sT4}, {sT3}, {8*U_PITCH}
v_mul_u32_u24 v115, {U_PITCH}, v7
v_lshl_add_u32 v115, v8, 4, v115
""")
        for ch in range(8):
            for t in range(4):
                src = SH + 2 * ch + (t >> 1)
                dst = SEL + 4 * ch + t
                if ch & 1 == 0:
                    p(f"v_and_b32 v{dst}, 0xffff, v{src}" if t & 1 == 0 else f"v_lshrrev_b32 v{dst}, 16, v{src}")
                else:
                    p(f"v_lshlrev_b32 v{dst}, 16, v{src}" if t & 1 == 0 else f"v_and_b32 v{dst}, {sHI}, v{src}")
        for row in range(2):
            for pr in range(4):
                p(f"v_lshlrev_b32 v{VU+4*pr+row}, 16, v{VR+4*row+pr}")
                p(f"v_and_b32 v{VU+4*pr+2+row}, {sHI}, v{VR+4*row+pr}")
        for t in range(4):
            for row in range(2):
                for ch in range(8):
                    m = 3 - t + row
                    a = ACC + 2 * ch + row
                    p(f"v_dot2_f32_bf16 v{a}, v{KR+4*m+(ch>>1)}, v{SEL+4*ch+t}, {'0' if t == 0 else 'v%d' % a}")
        for ch in range(8):
            p(f"v_pk_mul_f32 {vr(ACC+2*ch,2)}, {vr(ACC+2*ch,2)}, {vr(VU+2*ch,2)}")
        for ch in range(8):
            p(f"v_cvt_pk_bf16_f32 v{PK+ch}, v{ACC+2*ch}, v{ACC+2*ch+1}")
            p(f"ds_write_b32 v112, v{PK+ch} offset:{L_RS+128*ch}", "tw")
        p.wait("tw")
        p("s_barrier")
        p(f"ds_read_b128 {vr(KR,4)}, v113 offset:{L_RS}")
        p(f"ds_read_b128 {vr(KR+4,4)}, v114 offset:{L_RS+1024}")
        p(f"buffer_store_dwordx4 {vr(KR,4)}, v115, {sWS}, {sT3} offen sc0 sc1", "ust")
        p(f"buffer_store_dwordx4 {vr(KR+4,4)}, v115, {sWS}, {sT4} offen sc0 sc1", "ust")

    def mod_role(self):
        p = self.p
        p.label("L_mod")
        p.restore("role")
        self.finish_scalars()
        WR, TB, AC = 128, 64, 120
        done = self.lab("moddone")
        p(f"""
s_cmp_ge_u32 {sJ}, 21
s_cselect_b32 s{srd(11)+2}, 0, s{srd(11)+2}
v_lshlrev_b32 v7, 2, v0
buffer_load_dword v8, v7, {sC}, 0 offen
v_lshrrev_b32 v9, 4, v0
v_mul_u32_u24 v10, {28*5376}, v9
v_and_b32 v11, 15, v0
v_lshl_add_u32 v10, v11, 4, v10
s_lshl_b32 {sT0}, {sJ}, 8
""")
        for i in range(28):
            p(f"buffer_load_dwordx4 {vr(WR+4*i,4)}, v10, {sWM}, {sT0} offen nt")
            p(f"s_add_u32 {sT0}, {sT0}, 5376")
        self.q_loads()
        self.code_prefetch()
        p(f"""
v_lshlrev_b32 v112, 16, v8
v_and_b32 v113, {sHI}, v8
v_mul_f32 v114, 0xbfb8aa3b, v112
v_mul_f32 v115, 0xbfb8aa3b, v113
v_exp_f32 v114, v114
v_exp_f32 v115, v115
v_add_f32 v114, 1.0, v114
v_add_f32 v115, 1.0, v115
v_rcp_f32 v114, v114
v_rcp_f32 v115, v115
v_mul_f32 v112, v112, v114
v_mul_f32 v113, v113, v115
v_cvt_pk_bf16_f32 v116, v112, v113
v_and_b32 v112, 0xffff, v116
v_lshlrev_b32 v113, 16, v116
v_lshrrev_b32 v114, 16, v116
v_and_b32 v115, {sHI}, v116
v_lshlrev_b32 v12, 4, v0
""")
        p(f"ds_write_b128 v12, v[112:115] offset:{L_RS}", "tb")
        p(f"v_mul_u32_u24 v13, 224, v9")
        p.wait("tb")
        p("s_barrier")
        for i in range(14):
            p(f"ds_read_b128 {vr(TB+4*i,4)}, v13 offset:{L_RS+16*i}")
        for i in range(28):
            for c in range(8):
                p(f"v_dot2_f32_bf16 v{AC+c}, v{WR+4*i+(c>>1)}, v{TB+2*i+(c&1)}, {'0' if i == 0 else 'v%d' % (AC+c)}")
        p(f"""
v_lshlrev_b32 v12, 9, v9
v_lshl_add_u32 v12, v11, 5, v12
""")
        p(f"ds_write_b128 v12, {vr(AC,4)} offset:{L_RS+4096}", "tb2")
        p(f"ds_write_b128 v12, {vr(AC+4,4)} offset:{L_RS+4096+16}", "tb2")
        p.wait("tb2")
        p(f"""
s_barrier
s_cmp_eq_u32 {sWV}, 0
s_cbranch_scc0 {done}
v_lshlrev_b32 v12, 3, v1
""")
        for i in range(16):
            p(f"ds_read_b64 {vr(TB+2*i,2)}, v12 offset:{L_RS+4096+512*i}")
        for i in range(1, 16):
            p(f"v_pk_add_f32 {vr(TB,2)}, {vr(TB,2)}, {vr(TB+2*i,2)}")
        p(f"""
v_cvt_pk_bf16_f32 v112, v{TB}, v{TB+1}
v_lshlrev_b32 v12, 2, v1
s_lshl_b32 {sT0}, {sJ}, 8
s_add_u32 {sT0}, {sT0}, {WS_MOD}
""")
        p(f"buffer_store_dword v112, v12, {sWS}, {sT0} offen sc0 sc1", "mst")
        p.label(done)
        p("s_waitcnt vmcnt(0) lgkmcnt(0)\ns_branch L_p0_join")

    def publish0(self):
        p = self.p
        p.wait("ust")
        p.label("L_p0_join")
        p("s_barrier")
        p(f"""
s_lshl_b32 {sT0}, s2, 7
s_add_u32 {sT0}, {sT0}, {WS_F0}
s_cmp_eq_u32 {sWV}, 0
""")
        p(f"s_cselect_b32 {sT0}, {sT0}, 0x7ff00000")
        p.add(self.flag_store(sT0))

    def w_addr(self):
        self.p(f"""
s_lshr_b32 {sT0}, {sX}, 2
s_mul_i32 {sT0}, {sT0}, 7
s_lshr_b32 {sT1}, {sJ}, 2
s_add_u32 {sT0}, {sT0}, {sT1}
s_lshl_b32 {sT0}, {sT0}, 8
s_mul_i32 {sT1}, {sWV}, {4*3584}
s_add_u32 {sT0}, {sT0}, {sT1}
v_lshrrev_b32 v112, 4, v1
v_bfe_u32 v113, v1, 2, 2
v_xor_b32 v113, v113, v112
v_mul_u32_u24 v8, 3584, v112
v_lshl_add_u32 v8, v113, 6, v8
v_and_b32 v113, 3, v1
v_lshl_add_u32 v8, v113, 4, v8
v_add_u32 v8, {sT0}, v8
v_bfe_u32 v113, v1, 2, 2
v_lshrrev_b32 v114, 5, v1
v_lshl_add_u32 v114, v114, 3, v113
v_lshlrev_b32 v9, 8, v114
v_xor_b32 v113, {sWV}, v113
v_lshl_add_u32 v9, v113, 6, v9
v_and_b32 v113, 1, v112
v_lshl_add_u32 v9, v113, 5, v9
v_and_b32 v113, 1, v1
v_lshl_add_u32 v9, v113, 4, v9
v_bfe_u32 v113, v1, 1, 1
v_lshl_add_u32 v9, v113, 3, v9
v_add_u32 v9, {L_SA}, v9
v_add_u32 v10, 57344, v9
""")

    def w_dma(self, rnd):
        out = [I(f"s_lshl_b32 {sT4}, {sWV}, 10"), I(f"s_add_u32 {sT4}, {sT4}, {L_SA}"),
               I(f"s_mov_b32 {sT5}, {rnd*224*3584}")]
        for i in range(14):
            for mat, s in enumerate((sWG, sWU)):
                out.append(I(f"s_add_u32 m0, {sT4}, {mat*57344+4096*i}"))
                out.append(I(f"buffer_load_dwordx4 v8, {s}, {sT5} offen lds", f"wdma{rnd}"))
            out.append(I(f"s_add_u32 {sT5}, {sT5}, 57344"))
        return out

    def w_read(self, rnd):
        out = []
        for kl in range(14):
            for mat in range(2):
                for rd in range(2):
                    a = ((rnd * 14 + kl) * 2 + mat) * 4 + 2 * rd
                    out.append(I(f"ds_read_b64_tr_b16 {ar(a,2)}, v{9+mat} offset:{kl*4096+rd*1024}", f"wrd{rnd}"))
        return out

    def a_build(self):
        p = self.p
        p(f"""
s_lshr_b32 {sT0}, {sWV}, 1
s_and_b32 {sT1}, {sWV}, 1
s_mul_i32 {sT2}, {sT0}, 4128
s_lshl_b32 {sT3}, {sT1}, 8
s_add_u32 {sT2}, {sT2}, {sT3}
s_add_u32 {sT2}, {sT2}, {L_K+32+16}
v_and_b32 v112, 14, v1
v_lshlrev_b32 v112, 1, v112
v_lshrrev_b32 v113, 4, v1
v_lshlrev_b32 v114, 4, v113
v_sub_u32 v112, v112, v114
v_add_u32 v112, {sT2}, v112
v_and_b32 v114, 1, v1
v_cmp_eq_u32 vcc, 1, v114
v_mov_b32 v115, 0x03020504
v_mov_b32 v116, 0x05040706
v_cndmask_b32 v115, v115, v116, vcc
s_lshl_b32 {sT0}, {sT0}, 4
s_lshr_b32 {sT0}, {sD}, {sT0}
s_and_b32 {sT0}, {sT0}, 0xffff
s_cmp_eq_u32 {sT1}, 0
s_cselect_b32 {sT0}, {sT0}, 0
v_lshlrev_b32 v114, 4, v114
v_lshlrev_b32_e64 v116, v114, {sT0}
v_bfe_u32 v117, v1, 1, 3
v_add_u32 v117, 8, v117
v_lshlrev_b32 v113, 2, v113
v_sub_u32 v117, v117, v113
""")
        for d in range(4):
            p(f"v_cmp_eq_u32 vcc, {d}, v117\nv_cndmask_b32 v{124+d}, 0, v116, vcc")
        T = 64
        for i in range(8):
            for tt in range(4):
                t = T + 6 * ((4 * i + tt) % 8)
                o = (i & 1) * 128 + 16 * tt
                p(f"ds_read2_b32 {vr(t,2)}, v112 offset0:{o} offset1:{o+1}")
                p(f"ds_read2_b32 {vr(t+2,2)}, v112 offset0:{o+2} offset1:{o+3}")
                p(f"ds_read_b32 v{t+4}, v112 offset:{4*(o+4)}")
            if i & 1:
                p(f"v_add_u32 v112, 1024, v112")
            if i >= 1:
                self._a_perm(i - 1, T)
        self._a_perm(7, T)

    def _a_perm(self, i, T):
        for tt in range(4):
            t = T + 6 * ((4 * i + tt) % 8)
            for d in range(4):
                self.p(f"v_perm_b32 v{128+16*i+4*tt+d}, v{t+4-d}, v{t+3-d}, v115")

    def hop1(self):
        p = self.p
        p(f"""
s_and_b32 {sT0}, {sWV}, 1
s_lshl_b32 {sT1}, {sT0}, 14
s_lshl_b32 {sT2}, {sX}, 7
s_add_u32 {sT1}, {sT1}, {sT2}
s_add_u32 {sT1}, {sT1}, {WS_F0}
v_and_b32 v112, 15, v1
v_lshlrev_b32 v112, 10, v112
""")
        ld = [f"buffer_load_dword v113, v112, {sWS}, {sT1} offen sc1"]
        p(ld[0])
        p(f"""
s_lshl_b32 {sT2}, {sX}, 5
s_add_u32 {sT2}, {sT2}, {sJ}
s_lshl_b32 {sT2}, {sT2}, 1
s_lshr_b32 {sT3}, {sWV}, 1
s_add_u32 {sT2}, {sT2}, {sT3}
s_mul_i32 {sT2}, {sT2}, {U_PITCH}
s_lshl_b32 {sT0}, {sT0}, 11
s_add_u32 {sT2}, {sT2}, {sT0}
s_add_u32 {sT2}, {sT2}, {WS_U}
s_mul_i32 {sT3}, {sT3}, 4608
s_add_u32 {sT3}, {sT3}, {sT0}
s_add_u32 m0, {sT3}, {L_U+512}
""")
        p.add(self.check(ld, [f"v_cmp_ne_u32 vcc, {sTAG}, v113"]))
        p(f"buffer_load_dwordx4 v14, {sWS}, {sT2} offen sc1 lds", "udma")
        p(f"buffer_load_dwordx4 v14, {sWS}, {sT2} offen offset:1024 sc1 lds", "udma")

    def conv(self):
        p = self.p
        BR, AC, RD, GR = 64, 96, 112, 120
        p(f"""
s_lshr_b32 {sT0}, {sWV}, 1
s_and_b32 {sT1}, {sWV}, 1
s_mul_i32 {sT0}, {sT0}, 4608
s_lshl_b32 {sT1}, {sT1}, 8
s_sub_u32 {sT0}, {sT0}, {sT1}
s_add_u32 {sT0}, {sT0}, {L_U+512-32-192}
v_and_b32 v112, 15, v1
v_lshrrev_b32 v113, 4, v1
v_lshlrev_b32 v11, 5, v112
v_lshl_add_u32 v11, v113, 4, v11
v_add_u32 v11, {sT0}, v11
s_mul_i32 {sT0}, {sWV}, 2560
v_mul_u32_u24 v12, 320, v113
v_lshl_add_u32 v12, v112, 4, v12
v_add_u32 v12, {sT0}, v12
v_lshrrev_b32 v112, 7, v0
v_mul_u32_u24 v13, 1280, v112
v_bfe_u32 v112, v0, 1, 2
v_mul_u32_u24 v112, 320, v112
v_add_u32 v13, v13, v112
v_bfe_u32 v112, v0, 3, 4
v_lshl_add_u32 v13, v112, 4, v13
v_and_b32 v112, 1, v0
v_lshl_add_u32 v13, v112, 3, v13
v_lshlrev_b32 v15, 4, v0
s_lshl_b32 {sT0}, {sX}, 5
s_add_u32 {sT0}, {sT0}, {sJ}
s_mul_i32 {sT0}, {sT0}, {Z_PITCH}
s_add_u32 {sT0}, {sT0}, {WS_Z}
v_add_u32 v15, {sT0}, v15
v_mov_b32 v{GR+2}, {sTAG}
v_mov_b32 v{GR+3}, {sTAG}
""")
        p.wait("udma", "pads")
        p("s_barrier")
        self.stamp()
        steps = []
        for rho in range(4):
            for tt in range(4):
                for e in range(2 * rho + 2):
                    steps.append((rho, tt, e))
        DEPTH = 6
        def rd(n):
            rho, tt, e = steps[n]
            return I(f"ds_read_b128 {vr(BR+4*(n%8),4)}, v11 offset:{512*e+64*(3-tt)}")
        def epi_w(rho):
            o = L_RS + (rho & 1) * 10240
            return [I(f"ds_write_b128 v12, {vr(AC+8*(rho&1)+4*t,4)} offset:{o+1280*t}", f"cw{rho}") for t in range(2)]
        def epi_r(rho):
            o = L_RS + (rho & 1) * 10240
            L = [W(f"cw{rho}"), I("s_barrier")]
            L += [I(f"ds_read_b64 {vr(RD+2*s,2)}, v13 offset:{o+2560*s}") for s in range(4)]
            return L
        def epi_s(rho):
            return [I(f"v_add_f32 v{RD}, v{RD}, v{RD+2}"), I(f"v_add_f32 v{RD+1}, v{RD+1}, v{RD+3}"),
                    I(f"v_add_f32 v{RD+4}, v{RD+4}, v{RD+6}"), I(f"v_add_f32 v{RD+5}, v{RD+5}, v{RD+7}"),
                    I(f"v_cvt_pk_bf16_f32 v{GR}, v{RD}, v{RD+4}"), I(f"v_cvt_pk_bf16_f32 v{GR+1}, v{RD+1}, v{RD+5}"),
                    I(f"s_mov_b32 {sT0}, {4096*rho}"),
                    I(f"buffer_store_dwordx4 {vr(GR,4)}, v15, {sWS}, {sT0} offen sc0 sc1")]
        for n in range(DEPTH):
            p.add([rd(n)])
        first = set()
        start = {}
        for n, (rho, tt, e) in enumerate(steps):
            start.setdefault(rho, n)
            b = vr(BR + 4 * (n % 8), 4)
            for t in range(2):
                c = 2 * rho + t
                if e > c:
                    continue
                acc = vr(AC + 8 * (rho & 1) + 4 * t, 4)
                src = acc if c in first else "0"
                first.add(c)
                p(f"v_mfma_f32_16x16x32_bf16 {acc}, {vr(128+16*(c-e)+4*tt,4)}, {b}, {src}")
                if e == c and tt == 0:
                    p(f"v_mfma_f32_16x16x32_bf16 {acc}, v[124:127], {b}, {acc}")
                if t == 0 and n + DEPTH < len(steps):
                    p.add([rd(n + DEPTH)])
            if e == 2 * rho + 1 and n + DEPTH < len(steps):
                p.add([rd(n + DEPTH)])
            if rho >= 1:
                k = n - start[rho]
                if k == 2:
                    p.add(epi_w(rho - 1))
                if k == 5:
                    p.add(epi_r(rho - 1))
                if k == 8:
                    p.add(epi_s(rho - 1))
        p.add(epi_w(3) + epi_r(3) + epi_s(3))

    def wave_sum4(self, a):
        p = self.p
        for ctl in ("quad_perm:[1,0,3,2] row_mask:0xf", "quad_perm:[2,3,0,1] row_mask:0xf",
                    "row_half_mirror row_mask:0xf", "row_mirror row_mask:0xf",
                    "row_bcast:15 row_mask:0xa", "row_bcast:31 row_mask:0xc"):
            for i in range(4):
                p(f"v_add_f32_dpp v{a+i}, v{a+i}, v{a+i} {ctl} bank_mask:0xf")
        for i in range(4):
            p(f"v_readlane_b32 s{64+i}, v{a+i}, 63")

    def row_stats(self, pk, t):
        p = self.p
        p(f"s_mov_b32 {sT4}, 0x3f803f80")
        for d in range(4):
            for row in range(2):
                x = pk + 4 * row + d
                p(f"v_dot2_f32_bf16 v{t+row}, v{x}, {sT4}, {'0' if d == 0 else 'v%d' % (t+row)}")
                p(f"v_dot2_f32_bf16 v{t+2+row}, v{x}, v{x}, {'0' if d == 0 else 'v%d' % (t+2+row)}")
        self.wave_sum4(t)
        p(f"""
v_mov_b32 v{t+4}, 0x3b124925
v_mul_f32 v{t+2}, s64, v{t+4}
v_mul_f32 v{t+3}, s65, v{t+4}
v_mul_f32 v{t}, s66, v{t+4}
v_mul_f32 v{t+1}, s67, v{t+4}
v_fma_f32 v{t}, -v{t+2}, v{t+2}, v{t}
v_fma_f32 v{t+1}, -v{t+3}, v{t+3}, v{t+1}
v_max_f32 v{t}, 0, v{t}
v_max_f32 v{t+1}, 0, v{t+1}
v_add_f32 v{t}, 0x3727c5ac, v{t}
v_add_f32 v{t+1}, 0x3727c5ac, v{t+1}
v_rsq_f32 v{t}, v{t}
v_rsq_f32 v{t+1}, v{t+1}
v_mul_f32_e64 v{t+2}, -v{t+2}, v{t}
v_mul_f32_e64 v{t+3}, -v{t+3}, v{t+1}
""")

    def unpack(self, dst, src, n):
        for d in range(n):
            self.p(f"v_lshlrev_b32 v{dst+2*d}, 16, v{src+d}\nv_and_b32 v{dst+2*d+1}, {sHI}, v{src+d}")

    def ln1(self):
        p = self.p
        for d in range(8):
            p(f"v_mov_b32 v{64+d}, v{16+d}")
        self.row_stats(64, 72)
        self.unpack(16, 64, 8)
        for row in range(2):
            for d in range(4):
                a = 8 * row + 2 * d
                sel = "op_sel:[0,0,0] op_sel_hi:[1,0,0]" if row == 0 else "op_sel:[0,1,1] op_sel_hi:[1,1,1]"
                p(f"v_pk_fma_f32 {vr(32+a,2)}, {vr(16+a,2)}, v[72:73], v[74:75] {sel}")

    def ln_mod(self):
        p = self.p
        p(f"""
v_and_b32 v112, 31, v1
v_lshlrev_b32 v112, 10, v112
s_mov_b32 {sT0}, {WS_F0+7*128}
""")
        ld = [f"buffer_load_dword v113, v112, {sWS}, {sT0} offen sc1"]
        p(ld[0])
        p(f"""
v_lshlrev_b32 v114, 4, v1
v_mov_b32 v115, 0x7ff00000
v_cmp_gt_u32 vcc, 56, v1
v_cndmask_b32 v114, v115, v114, vcc
s_mov_b32 {sT1}, {WS_MOD}
""")
        p.add(self.check(ld, [f"v_cmp_ne_u32 vcc, {sTAG}, v113"]))
        for i in range(5):
            p(f"buffer_load_dwordx4 {vr(64+4*i,4)}, v114, {sWS}, {sT1} offen offset:{896*i} sc1")
        SA, CA, GA = 84, 92, 100
        self.unpack(SA, 64, 4)
        self.unpack(CA, 68, 4)
        self.unpack(GA, 72, 4)
        self.unpack(56, 76, 4)
        self.unpack(48, 80, 4)
        for base in (CA, 48):
            for d in range(8):
                p(f"v_add_f32 v{base+d}, 1.0, v{base+d}")
            for d in range(4):
                p(f"v_cvt_pk_bf16_f32 v{64+d}, v{base+2*d}, v{base+2*d+1}")
            self.unpack(base, 64, 4)
        for row in range(2):
            for d in range(4):
                a = 32 + 8 * row + 2 * d
                p(f"v_pk_fma_f32 {vr(a,2)}, {vr(a,2)}, {vr(CA+2*d,2)}, {vr(SA+2*d,2)}")
        for row in range(2):
            for d in range(4):
                a = 32 + 8 * row + 2 * d
                p(f"v_pk_mul_f32 {vr(a,2)}, {vr(a,2)}, {vr(GA+2*d,2)}")

    def ln2(self):
        p = self.p
        G, ZU, PKX, T, PKH = 64, 80, 96, 104, 112
        p(f"""
s_lshl_b32 {sT0}, {sWV}, 8
s_lshl_b32 {sT1}, {sX}, 5
s_add_u32 {sT0}, {sT0}, {sT1}
s_add_u32 {sT5}, {sT0}, {sJ}
s_lshl_b32 {sT0}, {sT5}, 4
s_add_u32 {sT0}, {sT0}, {WS_Z}
s_add_u32 {sT1}, {sT0}, {Z_PITCH}
s_add_u32 {sT2}, {sT0}, {2*Z_PITCH}
s_add_u32 {sT3}, {sT0}, {3*Z_PITCH}
v_min_u32 v120, 55, v1
v_mul_u32_u24 v120, {4*Z_PITCH}, v120
""")
        ld = [f"buffer_load_dwordx4 {vr(G+4*i,4)}, v120, {sWS}, s{64+i} offen sc1" for i in range(4)]
        p.add(ld)
        cmpc = [f"v_xor_b32 v121, {sTAG}, v{G+2}", f"v_xor_b32 v122, {sTAG}, v{G+6}",
                f"v_xor_b32 v123, {sTAG}, v{G+10}", f"v_or3_b32 v121, v121, v122, v123",
                f"v_xor_b32 v122, {sTAG}, v{G+14}", f"v_or_b32 v121, v121, v122",
                f"v_cmp_ne_u32 vcc, 0, v121"]
        p.add(self.check(ld, cmpc))
        self.stamp()
        for row in range(2):
            for d in range(4):
                a = 8 * row + 2 * d
                p(f"v_lshlrev_b32 v{ZU+a}, 16, v{G+4*d+row}\nv_and_b32 v{ZU+a+1}, {sHI}, v{G+4*d+row}")
        for a in range(0, 16, 2):
            p(f"v_pk_fma_f32 {vr(16+a,2)}, {vr(32+a,2)}, {vr(ZU+a,2)}, {vr(16+a,2)}")
        for d in range(8):
            p(f"v_cvt_pk_bf16_f32 v{PKX+d}, v{16+2*d}, v{17+2*d}")
        self.row_stats(PKX, T)
        p(f"s_mov_b32 {sT0}, {WS_X1}\ns_mov_b32 {sT1}, {WS_H2}")
        for row in range(2):
            for d in range(4):
                a = 16 + 8 * row + 2 * d
                sel = "op_sel:[0,0,0] op_sel_hi:[1,0,0]" if row == 0 else "op_sel:[0,1,1] op_sel_hi:[1,1,1]"
                p(f"v_pk_fma_f32 {vr(a,2)}, {vr(a,2)}, {vr(T,2)}, {vr(T+2,2)} {sel}")
            for d in range(4):
                a = 16 + 8 * row + 2 * d
                p(f"v_pk_fma_f32 {vr(a,2)}, {vr(a,2)}, {vr(48+2*d,2)}, {vr(56+2*d,2)}")
            for d in range(4):
                a = 16 + 8 * row + 2 * d
                p(f"v_cvt_pk_bf16_f32 v{PKH+4*row+d}, v{a}, v{a+1}")
            p(f"buffer_store_dwordx4 {vr(PKH+4*row,4)}, v3, {sWS}, {sT1} offen offset:{896*row} sc0 sc1", "hst")
        for row in range(2):
            p(f"buffer_store_dwordx4 {vr(PKX+4*row,4)}, v3, {sWS}, {sT0} offen offset:{896*row} sc0 sc1", "hst")
        p(f"s_lshl_b32 {sT5}, {sT5}, 7\ns_add_u32 {sT5}, {sT5}, {WS_F2}")
        p.wait("hst")
        p.add(self.flag_store(sT5))
        p(f"""
s_or_b32 {sT0}, s2, {sWV}
s_cmp_eq_u32 {sT0}, 0
s_cselect_b32 {sT0}, {WS_EPOCH}, 0x7ff00000
""")
        p.add(self.flag_store(sT0))

    XS, XB, FA, HO, WDS, WDR = 5, 16, 20, 21, 22, 24
    sRB, sF2, sXG, sHQ, sF3, sWDO, sWDL = "s44", "s45", "s46", "s47", "s48", "s49", "s50"

    def p2_addr(self):
        p = self.p
        XS, XB, FA, HO, WDS, WDR = self.XS, self.XB, self.FA, self.HO, self.WDS, self.WDR
        p(f"""
s_and_b32 {sT0}, {sX}, 3
s_lshl_b32 {sT0}, {sT0}, 2
s_and_b32 {sT1}, {sJ}, 3
s_add_u32 {self.sRB}, {sT0}, {sT1}
s_lshl_b32 {self.sF2}, {self.sRB}, 11
s_add_u32 {self.sF2}, {self.sF2}, {WS_F2}
s_mul_i32 {self.sXG}, {self.sRB}, 28672
s_add_u32 {self.sXG}, {self.sXG}, {WS_H2}
s_lshr_b32 {sT0}, {sX}, 2
s_mul_i32 {sT0}, {sT0}, 7
s_lshr_b32 {sT1}, {sJ}, 2
s_add_u32 {sT0}, {sT0}, {sT1}
s_lshl_b32 {sT0}, {sT0}, 2
s_add_u32 {sT0}, {sT0}, {sWV}
s_mul_i32 {sT1}, {self.sRB}, 112
s_add_u32 {sT1}, {sT1}, {sT0}
s_lshl_b32 {self.sHQ}, {sT1}, 10
s_add_u32 {self.sHQ}, {self.sHQ}, {WS_H}
s_mul_i32 {sT1}, {self.sRB}, 56
s_add_u32 {sT1}, {sT1}, {sT0}
s_lshl_b32 {self.sF3}, {sT1}, 7
s_add_u32 {self.sF3}, {self.sF3}, {WS_F3}
v_and_b32 v{FA}, 15, v1
v_lshlrev_b32 v{FA}, 7, v{FA}
s_mul_i32 {sT0}, {sWV}, 448
s_mov_b32 {sT1}, 0x2493
""")
        for i in range(7):
            p(f"""
v_add_u32 v112, {sT0}, v1
v_add_u32 v112, {64*i}, v112
v_mul_u32_u24 v113, {sT1}, v112
v_bfe_u32 v113, v113, 20, 3
v_xor_b32 v112, v112, v113
v_lshlrev_b32 v{XS+i}, 4, v112
""")
        p(f"""
v_and_b32 v112, 31, v1
v_mul_u32_u24 v113, 896, v112
v_bfe_u32 v112, v1, 1, 3
v_lshrrev_b32 v114, 5, v1
v_xor_b32 v112, v112, v114
""")
        for i in range(4):
            p(f"v_xor_b32 v114, {2*i}, v112\nv_lshl_add_u32 v{XB+i}, v114, 4, v113")
        p(f"""
v_bfe_u32 v112, v1, 4, 1
v_mul_u32_u24 v{HO}, 57344, v112
v_lshrrev_b32 v112, 5, v1
v_lshl_add_u32 v{HO}, v112, 8, v{HO}
v_and_b32 v112, 15, v1
v_lshl_add_u32 v{HO}, v112, 4, v{HO}
""")
        p(f"""
s_mul_i32 {self.sWDO}, {sWV}, {448*896}
s_lshr_b32 {sT0}, {sJ}, 2
s_lshl_b32 {sT0}, {sT0}, 7
s_add_u32 {self.sWDO}, {self.sWDO}, {sT0}
s_mul_i32 {self.sWDL}, {sWV}, 24576
s_add_u32 {self.sWDL}, {self.sWDL}, {L_WD}
v_lshrrev_b32 v112, 3, v1
v_mul_u32_u24 v113, 896, v112
v_and_b32 v114, 1, v1
v_lshl_add_u32 v113, v114, 4, v113
v_bfe_u32 v114, v1, 1, 2
v_bfe_u32 v115, v1, 4, 1
v_xor_b32 v114, v114, v115
v_lshl_add_u32 v{WDS}, v114, 5, v113
v_xor_b32 v114, 2, v114
v_lshl_add_u32 v{WDS+1}, v114, 5, v113
v_lshrrev_b32 v112, 4, v1
v_bfe_u32 v113, v1, 2, 2
v_lshl_add_u32 v114, v112, 3, v113
v_lshlrev_b32 v114, 7, v114
v_and_b32 v115, 3, v1
v_lshl_add_u32 v114, v115, 3, v114
v_add_u32 v114, {self.sWDL}, v114
v_bfe_u32 v115, v1, 3, 2
""")
        for t in range(4):
            p(f"v_xor_b32 v116, {t}, v115\nv_lshl_add_u32 v{WDR+t}, v116, 5, v114")

    def x_poll(self, rho):
        ld = [f"buffer_load_dword v30, v{self.FA}, {sWS}, {self.sF2} offen sc1"]
        return ld

    def x_dma(self, rho):
        out = [I(f"s_mul_i32 {sT0}, {sWV}, 7168"), I(f"s_add_u32 {sT0}, {sT0}, {(L_X0, L_X1)[rho&1]}")]
        for i in range(7):
            out.append(I(f"s_add_u32 m0, {sT0}, {1024*i}"))
            out.append(I(f"buffer_load_dwordx4 v{self.XS+i}, {sWS}, {self.sXG} offen sc1 lds", f"xdma{rho}"))
        out.append(I(f"s_add_u32 {self.sXG}, {self.sXG}, {512*896}"))
        out.append(I(f"s_add_u32 {self.sF2}, {self.sF2}, {256*128}"))
        return out

    def wd_dma(self, step):
        out = []
        for n in range(4):
            out.append(I(f"s_add_u32 m0, {self.sWDL}, {(step%6)*4096+1024*n}"))
            out.append(I(f"buffer_load_dwordx4 v{self.WDS+(n&1)}, {sWD}, {self.sWDO} offen lds", f"wd{step}"))
            out.append(I(f"s_add_u32 {self.sWDO}, {self.sWDO}, {8*896}"))
        return out

    def wd_reg(self, step, t):
        if step < 8:
            return ("v", 128 + 16 * step + 4 * t)
        return ("a", 16 * (step - 8) + 4 * t)

    def wd_read(self, step):
        out = [W(f"wd{step}")]
        for t in range(4):
            k, a = self.wd_reg(step, t)
            for rd in range(2):
                out.append(I(f"ds_read_b64_tr_b16 {k}[{a+2*rd}:{a+2*rd+1}], v{self.WDR+t} offset:{(step%6)*4096+512*rd}", f"wdr{step}"))
        return out

    def p2_epi(self, rho):
        ac = 64 + 32 * (rho & 1)
        out = []
        for r in range(16):
            out.append(I(f"v_mul_f32 v{ac+r}, v{ac+r}, v{ac+16+r}"))
        for r in range(8):
            out.append(I(f"v_cvt_pk_bf16_f32 v{32+r}, v{ac+2*r}, v{ac+2*r+1}"))
        for chi in range(2):
            out.append(I(f"buffer_store_dwordx4 {vr(32+4*chi,4)}, v{self.HO}, {sWS}, {self.sHQ} offen offset:{512*chi} sc0 sc1", f"Hst{rho}"))
        out.append(I(f"s_add_u32 {self.sHQ}, {self.sHQ}, {32*57344}"))
        return out

    def p2_flag(self, rho):
        return [W(f"Hst{rho}")] + self.flag_store(self.sF3) + [I(f"s_add_u32 {self.sF3}, {self.sF3}, {16*56*128}")]

    def p2(self):
        p = self.p
        XR, NR, DEPTH = 40, 6, 4
        cmpc = [f"v_cmp_ne_u32 vcc, {sTAG}, v30"]
        p.add(self.x_poll(0))
        p.add(self.check(self.x_poll(0), cmpc))
        p.add(self.x_dma(0))
        for s in range(6):
            p.add(self.wd_dma(s))
        for rho in range(4):
            xb = (L_X0, L_X1)[rho & 1]
            ac = 64 + 32 * (rho & 1)
            p.wait(f"xdma{rho}")
            p("s_waitcnt lgkmcnt(0)\ns_barrier")
            if rho == 0:
                self.stamp()
            rd = lambda k: I(f"ds_read_b128 {vr(XR+4*(k%NR),4)}, v{self.XB+(k&3)} offset:{xb+128*(k>>2)}")
            fill = []
            if rho < 3:
                fill += [I(x) for x in self.x_poll(rho + 1)]
            if rho > 0:
                fill += self.p2_epi(rho - 1)
            if rho < 3:
                fill += self.check(self.x_poll(rho + 1), cmpc) + self.x_dma(rho + 1)
            if rho > 0:
                fill += self.p2_flag(rho - 1)
            for s in (2 * rho, 2 * rho + 1):
                fill += self.wd_read(s) + [W(f"wdr{s}")] + self.wd_dma(s + 6)
            main = []
            for k in range(28):
                for mat in range(2):
                    acc = vr(ac + 16 * mat, 16)
                    main.append(I(f"v_mfma_f32_32x32x16_bf16 {acc}, {ar((2*k+mat)*4,4)}, {vr(XR+4*(k%NR),4)}, {'0' if k == 0 else acc}"))
            p.add([rd(k) for k in range(DEPTH)])
            fi = 0
            per = len(fill) / 50.0
            accum = 0.0
            for n, m in enumerate(main):
                p.add([m])
                if n & 1 == 0 and n // 2 + DEPTH < 28:
                    p.add([rd(n // 2 + DEPTH)])
                if n >= 3:
                    accum += per
                    while accum >= 1 and fi < len(fill):
                        p.add([fill[fi]])
                        fi += 1
                        accum -= 1
            p.add(fill[fi:])
        self.stamp()
        p.add(self.p2_epi(3))

    def p3(self):
        p = self.p
        sM, sHB, sFB, sXO = "s51", "s44", "s45", "s46"
        FA3, HL, RW, RR, OO = 5, 6, 7, 8, 9
        GB, AC, RD, XQ = 12, 64, 40, 56
        HF = 96
        p(f"""
s_lshl_b32 {sM}, {sX}, 2
s_and_b32 {sT0}, {sJ}, 3
s_add_u32 {sM}, {sM}, {sT0}
s_mul_i32 {sT0}, {sWV}, 14
s_mul_i32 {sT1}, {sM}, 56
s_add_u32 {sT1}, {sT1}, {sT0}
s_lshl_b32 {sHB}, {sT1}, 10
s_add_u32 {sHB}, {sHB}, {WS_H}
s_lshr_b32 {sT1}, {sM}, 1
s_mul_i32 {sT1}, {sT1}, 56
s_add_u32 {sT1}, {sT1}, {sT0}
s_lshl_b32 {sFB}, {sT1}, 7
s_add_u32 {sFB}, {sFB}, {WS_F3}
v_min_u32 v{FA3}, 13, v1
v_lshlrev_b32 v{FA3}, 7, v{FA3}
v_lshlrev_b32 v{HL}, 4, v1
s_mul_i32 {sT0}, {sWV}, 4352
v_and_b32 v112, 15, v1
v_mul_u32_u24 v{RW}, 272, v112
v_lshrrev_b32 v113, 4, v1
v_lshl_add_u32 v{RW}, v113, 4, v{RW}
v_add_u32 v{RW}, {sT0}, v{RW}
v_lshrrev_b32 v113, 4, v0
v_mul_u32_u24 v{RR}, 272, v113
v_lshl_add_u32 v{RR}, v112, 4, v{RR}
s_lshr_b32 {sT0}, {sJ}, 2
s_lshl_b32 {sT0}, {sT0}, 7
v_lshl_add_u32 v114, v112, 3, {sT0}
s_mov_b32 {sT1}, {WS_MOD+5*896}
buffer_load_dwordx2 v[10:11], v114, {sWS}, {sT1} offen sc1
v_mul_u32_u24 v{OO}, 896, v113
v_add_u32 v{OO}, v{OO}, v114
s_mul_i32 {sXO}, {sM}, {16*896}
""")
        ldf = [f"buffer_load_dword v30, v{FA3}, {sWS}, {sFB} offen sc1"]
        cmpc = [f"v_cmp_ne_u32 vcc, {sTAG}, v30"]
        def hload(rho):
            out = [I(x) for x in ldf] + self.check(ldf, cmpc)
            for k in range(14):
                slot = (14 * rho + k) % 40
                if k and k % 4 == 0:
                    out.append(I(f"s_add_u32 {sHB}, {sHB}, 4096"))
                out.append(I(f"buffer_load_dwordx4 {ar(HF+4*slot,4)}, v{HL}, {sWS}, {sHB} offen offset:{1024*(k%4)} sc1"))
            out.append(I(f"s_add_u32 {sHB}, {sHB}, {32*57344-3*4096}"))
            out.append(I(f"s_add_u32 {sFB}, {sFB}, {16*56*128}"))
            out.append(I(f"s_add_u32 {sT2}, {sXO}, {WS_X1+rho*512*896}"))
            out.append(I(f"buffer_load_dwordx2 {vr(XQ+2*rho,2)}, v{OO}, {sWS}, {sT2} offen sc1"))
            return out
        def epi_w(rho):
            return [I(f"ds_write_b128 v{RW}, {vr(AC+16*(rho&1)+4*t,4)} offset:{L_R3[rho&1]+64*t}", f"rw{rho}") for t in range(4)]
        def epi_r(rho):
            return [W(f"rw{rho}"), I("s_barrier")] + \
                [I(f"ds_read_b128 {vr(RD+4*s,4)}, v{RR} offset:{L_R3[rho&1]+4352*s}") for s in range(4)]
        def epi_s(rho):
            o = []
            for i in range(4):
                o.append(I(f"v_add_f32 v{RD+i}, v{RD+i}, v{RD+4+i}"))
                o.append(I(f"v_add_f32 v{RD+8+i}, v{RD+8+i}, v{RD+12+i}"))
            for i in range(4):
                o.append(I(f"v_add_f32 v{RD+i}, v{RD+i}, v{RD+8+i}"))
            for d in range(2):
                o.append(I(f"v_lshlrev_b32 v{RD+4+2*d}, 16, v{XQ+2*rho+d}"))
                o.append(I(f"v_and_b32 v{RD+5+2*d}, {sHI}, v{XQ+2*rho+d}"))
            for i in range(4):
                o.append(I(f"v_fma_f32 v{RD+i}, v{RD+i}, v{GB+i}, v{RD+4+i}"))
            for d in range(2):
                o.append(I(f"v_cvt_pk_bf16_f32 v{RD+8+d}, v{RD+2*d}, v{RD+2*d+1}"))
            o.append(I(f"s_add_u32 {sT3}, {sXO}, {rho*512*896}"))
            o.append(I(f"buffer_store_dwordx2 {vr(RD+8,2)}, v{OO}, {sOUT}, {sT3} offen"))
            return o
        p.add(hload(0))
        p.add(self.p2_flag(3))
        for s in range(8, 14):
            p.add(self.wd_read(s))
        p.add(hload(1))
        self.unpack(GB, 10, 2)
        for rho in range(4):
            main = []
            for k in range(14):
                slot = (14 * rho + k) % 40
                for t in range(4):
                    kk, a = self.wd_reg(k, t)
                    acc = vr(AC + 16 * (rho & 1) + 4 * t, 4)
                    main.append(I(f"v_mfma_f32_16x16x32_bf16 {acc}, {kk}[{a}:{a+3}], {ar(HF+4*slot,4)}, {'0' if k == 0 else acc}"))
            fill = []
            if rho > 0:
                fill += epi_w(rho - 1) + epi_r(rho - 1) + epi_s(rho - 1)
            late = hload(rho + 2) if rho < 2 else []
            p.add(weave(main[:28], fill, per=1.5, start=6))
            p.add(weave(main[28:], late, per=1.0, start=0))
        p.add(epi_w(3) + epi_r(3) + epi_s(3))

    def dump_stamps(self):
        p = self.p
        p.label("L_end")
        if self.stamps:
            self.stamp()
            p(f"""
s_waitcnt vmcnt(0) lgkmcnt(0)
s_lshl_b32 {sT0}, s2, 2
s_add_u32 {sT0}, {sT0}, {sWV}
s_lshl_b32 {sT0}, {sT0}, 6
s_add_u32 {sT0}, {sT0}, {WS_STAMP}
v_mov_b32 v1, 0
s_mov_b64 exec, 1
""")
            for i in range(self.nstamp):
                p(f"v_mov_b32 v2, s{STAMP0+2*i}\nbuffer_store_dword v2, v1, {sWS}, {sT0} offen offset:{4*i}")
            p(f"v_mov_b32 v2, {sRETRY}\nbuffer_store_dword v2, v1, {sWS}, {sT0} offen offset:60")
        p.label("L_exit")
        p("s_endpgm")

    def build(self):
        p = self.p
        self.prologue()
        if self.stamps:
            for i in range(1, 15):
                p(f"s_mov_b32 s{STAMP0+2*i}, 0")
        p.snapshot("role")
        p(f"s_cmp_eq_u32 {sX}, 7\ns_cbranch_scc1 L_mod")
        self.p0()
        self.stamp()
        self.publish0()
        self.stamp()
        self.w_addr()
        p.add(self.w_dma(0))
        self.ln1()
        p(f"s_cmp_eq_u32 {sX}, 7")
        self.skip_if_scc1("L_noab")
        self.a_build()
        p.label("L_noab")
        p.wait("wdma0")
        p("s_barrier")
        p.add(self.w_read(0))
        p.wait("wrd0")
        p("s_barrier")
        self.stamp()
        p(f"s_cmp_eq_u32 {sX}, 7")
        self.skip_if_scc1("L_nohop")
        self.hop1()
        p.label("L_nohop")
        p.add(self.w_dma(1))
        p(f"s_cmp_eq_u32 {sX}, 7")
        self.skip_if_scc1("L_noconv")
        self.conv()
        p.label("L_noconv")
        self.stamp()
        self.ln_mod()
        self.ln2()
        self.stamp()
        p(f"s_cmp_ge_u32 {sJ}, 28\ns_cbranch_scc1 L_end")
        p.wait("wdma1")
        p("s_barrier")
        p.add(self.w_read(1))
        self.p2_addr_after_wread()
        self.p2()
        self.p3()
        self.dump_stamps()
        self.mod_role()
        body = p.finalize(verbose=self.opt.get("verbose", False))
        return body + "\n".join(self.tail) + "\nL_code_end:\n"

    def p2_addr_after_wread(self):
        self.p.wait("wrd1")
        self.p2_addr()
        self.p("s_barrier")


HEAD = open("cdna_kernels/" + NAME + ".s.ref").read().split("; Override launch geometry")[0]


def generate(**kw):
    opt = kw.setdefault("opt", {})
    opt.setdefault("code_bytes", 32768)
    body = Gen(**kw).build()
    return f"""{HEAD}; @launch grid=(256,1,1) block=(256,1,1) lds={LDS_BYTES}
.amdgcn_target "amdgcn-amd-amdhsa--gfx950"
.text
.globl {NAME}_kernel
.p2align 8
.type {NAME}_kernel,@function
{NAME}_kernel:
{body}
.section .rodata,"a"
.p2align 6
.amdhsa_kernel {NAME}_kernel
  .amdhsa_next_free_vgpr 512
  .amdhsa_next_free_sgpr 102
  .amdhsa_accum_offset 256
  .amdhsa_group_segment_fixed_size 0
  .amdhsa_kernarg_size 120
  .amdhsa_user_sgpr_count 2
  .amdhsa_user_sgpr_kernarg_segment_ptr 1
  .amdhsa_system_sgpr_workgroup_id_x 1
  .amdhsa_float_denorm_mode_32 3
.end_amdhsa_kernel
"""


if __name__ == "__main__":
    import argparse
    ap = argparse.ArgumentParser()
    ap.add_argument("-o", default="k.s")
    ap.add_argument("--stamps", action="store_true")
    ap.add_argument("-v", action="store_true")
    a = ap.parse_args()
    open(a.o, "w").write(generate(stamps=a.stamps, opt={"verbose": a.v}))
```
